```python
import torch

def _softmax(x, axis=-1):
    return torch.softmax(x, dim=axis)
def _gelu(x):
    return torch.nn.functional.gelu(x, approximate="tanh")
def _silu(x):
    return torch.nn.functional.silu(x)
def _sigmoid(x):
    return torch.sigmoid(x)
def _layernorm(x, axis=-1, eps=1e-5):
    m = x.mean(dim=axis, keepdim=True)
    v = x.var(dim=axis, keepdim=True, unbiased=False)
    return (x - m) / torch.sqrt(v + eps)
def _scatter_add(tgt, idx, src, axis=0):
    return tgt.clone().index_add_(axis, idx, src)
def _segment_sum(src, seg, n):
    out = torch.zeros((n,) + src.shape[1:], dtype=src.dtype)
    return out.index_add_(0, seg, src)
def _pad(x, pw):
    flat = tuple(v for pair in reversed(pw) for v in pair)
    return torch.nn.functional.pad(x, flat)

kernel_name = 'standalone__gqa_block_cached__near_ridge'

def setup_inputs():

    _w = (lambda a: (lambda t: t.to(torch.bfloat16) if t.is_floating_point() else t)(torch.as_tensor(a)))
    B, Sq, D = 16, 64, 448
    Hq, Hkv, Sk, Dh = 16, 8, 512, 256
    assert Hq % Hkv == 0, (Hq, Hkv)
    return {
        "x": _w((lambda *s: torch.randn(*s, dtype=torch.bfloat16) * 0.8)(B, Sq, D)),
        "k_cache": _w((lambda *s: torch.randn(*s, dtype=torch.bfloat16) * 0.8)(B, Hkv, Sk, Dh)),
        "v_cache": _w((lambda *s: torch.randn(*s, dtype=torch.bfloat16) * 0.05)(B, Hkv, Sk, Dh)),
        "wq": _w((lambda *s: torch.randn(*s, dtype=torch.bfloat16) * 0.8)(D, Hq * Dh) * (D ** -0.5)),
        "wo": _w((lambda *s: torch.randn(*s, dtype=torch.bfloat16) * 0.05)(Hq * Dh, D) * ((Hq * Dh) ** -0.5)),
    }

def reference(x, k_cache, v_cache, wq, wo):
    B, Sq, D = x.shape
    Hq, Dh = 16, 256
    Hkv = k_cache.shape[1]
    rep = Hq // Hkv
    q = (lambda x, *d: x.permute(*d))((x @ wq).reshape(B, Sq, Hq, Dh), 0, 2, 1, 3)
    k = (lambda x, n, axis: torch.repeat_interleave(x, n, dim=axis))(k_cache, rep, axis=1)
    v = (lambda x, n, axis: torch.repeat_interleave(x, n, dim=axis))(v_cache, rep, axis=1)
    scores = torch.einsum("bhqd,bhkd->bhqk", q, k) * (Dh ** -0.5)
    p = _softmax(scores, axis=-1)
    o = torch.einsum("bhqk,bhkd->bhqd", p, v)
    return (lambda x, *d: x.permute(*d))(o, 0, 2, 1, 3).reshape(B, Sq, Hq * Dh) @ wo
```

```python
import re

_REG = re.compile(r"^-?(?:abs\()?([vs])(?:(\d+)|\[(\d+):(\d+)\])\)?$")
TRANS = ("v_exp_f32", "v_log_f32", "v_rcp_f32", "v_rsq_f32", "v_sqrt_f32", "v_sin_f32", "v_cos_f32")


def regs_of(tok):
    tok = tok.strip()
    if tok == "vcc":
        return ("s", {106, 107})
    if tok == "exec":
        return ("s", {126, 127})
    if tok == "m0":
        return ("s", {124})
    m = _REG.match(tok)
    if not m:
        return None
    if m.group(2) is not None:
        return (m.group(1), {int(m.group(2))})
    return (m.group(1), set(range(int(m.group(3)), int(m.group(4)) + 1)))


class I:
    __slots__ = ("text", "tag", "mn", "kind", "vw", "vr", "sw", "sr", "ops", "mfmaC", "states")

    def __init__(self, text, tag=None):
        self.text = text
        self.tag = tag
        t = text.split(";")[0].strip()
        self.vw, self.vr, self.sw, self.sr = set(), set(), set(), set()
        self.mfmaC = None
        self.states = 1
        if t.endswith(":") or t.startswith(".") or t.startswith("@") or not t:
            self.mn = t
            self.kind = "pseudo"
            self.states = 0
            self.ops = []
            return
        parts = t.split(None, 1)
        mn = self.mn = parts[0]
        rest = parts[1] if len(parts) > 1 else ""
        ops = [o.strip() for o in rest.split(",")] if rest else []
        mods = []
        if ops:
            last = ops[-1].split()
            ops[-1] = last[0] if last else ""
            mods = last[1:]
        self.ops = ops
        R = [regs_of(o) for o in ops]

        def rd(r):
            if r:
                (self.vr if r[0] == "v" else self.sr).update(r[1])

        def wr(r):
            if r:
                (self.vw if r[0] == "v" else self.sw).update(r[1])

        if mn.startswith("v_mfma"):
            self.kind = "mfma"
            wr(R[0]); rd(R[1]); rd(R[2]); rd(R[3])
            self.mfmaC = R[3][1] if R[3] else None
        elif mn.startswith("v_"):
            self.kind = "trans" if mn.replace("_e32", "").replace("_e64", "") in TRANS else "valu"
            if mn.startswith("v_permlane32_swap") or mn.startswith("v_permlane16_swap") or mn.startswith("v_swap"):
                for r in R:
                    rd(r); wr(r)
            elif mn.startswith("v_add_co") or mn.startswith("v_addc_co") or mn.startswith("v_sub_co"):
                wr(R[0]); wr(R[1])
                for r in R[2:]:
                    rd(r)
            else:
                wr(R[0])
                for r in R[1:]:
                    rd(r)
                if mn.startswith("v_fmac") or mn.startswith("v_pk_fmac"):
                    rd(R[0])
        elif mn.startswith("ds_"):
            self.kind = "ds"
            if mn.startswith("ds_read") or mn.startswith("ds_bpermute") or mn.startswith("ds_swizzle"):
                wr(R[0])
                for r in R[1:]:
                    rd(r)
            else:
                for r in R:
                    rd(r)
        elif mn.startswith("buffer_") or mn.startswith("global_"):
            self.kind = "vmem"
            if "lds" in mods:
                for r in R:
                    rd(r)
                self.sr.add(124)
                self.kind = "dma"
            elif "load" in mn:
                wr(R[0])
                for r in R[1:]:
                    rd(r)
            else:
                for r in R:
                    rd(r)
                if "atomic" in mn and "sc0" in mods:
                    wr(R[0])
        elif mn.startswith("s_load") or mn.startswith("s_memtime") or mn.startswith("s_memrealtime"):
            self.kind = "smem"
            wr(R[0])
            for r in R[1:]:
                rd(r)
        elif mn == "s_nop":
            self.kind = "nop"
            self.states = int(ops[0], 0) + 1
        elif mn in ("s_waitcnt", "s_barrier", "s_endpgm", "s_setprio", "s_sleep") or mn.startswith("s_cbranch") or mn == "s_branch":
            self.kind = "ctl"
        elif mn.startswith("s_"):
            self.kind = "salu"
            if mn.startswith("s_cmp") or mn.startswith("s_bitcmp"):
                for r in R:
                    rd(r)
            else:
                wr(R[0])
                for r in R[1:]:
                    rd(r)
                if "saveexec" in mn:
                    self.sw.update({126, 127})
        else:
            raise ValueError("unknown instr " + text)


class Stream:
    def __init__(self):
        self.l = []

    def __call__(self, text, tag=None):
        for line in text.strip().split("\n"):
            line = line.strip()
            if line:
                self.l.append(I(line, tag))

    def finish(self):
        return fix(self.l)


MFMA_TO_OTHER = 12
MFMA_TO_C_OVERLAP = 10


def fix(lst):
    out = []
    pos = 0
    mf_w = {}
    va_w = {}
    tr_w = {}
    vs_w = {}
    m0_w = -100
    st_data = {}
    lg = []
    vm = []
    smem_out = False

    def emit(i):
        nonlocal pos
        out.append(i)
        pos += i.states

    def wait_lg(n):
        nonlocal lg
        n = min(n, 15)
        emit(I(f"s_waitcnt lgkmcnt({n})"))
        lg = lg[len(lg) - n:] if n > 0 else []

    def wait_vm(n):
        nonlocal vm
        n = min(n, 63)
        emit(I(f"s_waitcnt vmcnt({n})"))
        vm = vm[len(vm) - n:] if n > 0 else []

    for i in lst:
        if i.kind == "pseudo":
            if i.mn.startswith("@drain"):
                tags = set(i.mn.split()[1:])
                idx = -1
                for k, (d, t) in enumerate(lg):
                    if t in tags:
                        idx = k
                if idx >= 0:
                    wait_lg(len(lg) - 1 - idx)
                continue
            if i.mn.startswith("@"):
                continue
            out.append(i)
            continue
        if i.mn == "s_waitcnt":
            m = re.search(r"lgkmcnt\((\d+)\)", i.text)
            if m:
                n = int(m.group(1))
                lg = lg[len(lg) - n:] if n > 0 else []
                if n == 0:
                    smem_out = False
            m = re.search(r"vmcnt\((\d+)\)", i.text)
            if m:
                n = int(m.group(1))
                vm = vm[len(vm) - n:] if n > 0 else []
            emit(i)
            continue
        touched = i.vr | i.vw
        idx = -1
        for k, (d, t) in enumerate(lg):
            if d & touched:
                idx = k
        if idx >= 0:
            assert not smem_out, "counted lgkm wait with smem outstanding: " + i.text
            wait_lg(len(lg) - 1 - idx)
        idx = -1
        for k, d in enumerate(vm):
            if d & touched:
                idx = k
        if idx >= 0:
            wait_vm(len(vm) - 1 - idx)
        need = 0

        def req(p, n):
            nonlocal need
            need = max(need, n - (pos - p))

        if i.kind == "mfma":
            ab = set()
            for o in i.ops[1:3]:
                r = regs_of(o)
                if r:
                    ab |= r[1]
            for r in ab:
                if r in mf_w:
                    req(mf_w[r][0], MFMA_TO_OTHER)
            if i.mfmaC:
                for r in i.mfmaC:
                    if r in mf_w and mf_w[r][1] != i.mfmaC:
                        req(mf_w[r][0], MFMA_TO_C_OVERLAP)
            for r in i.vr:
                if r in va_w:
                    req(va_w[r], 2)
        elif i.kind in ("valu", "trans", "ds", "vmem", "dma"):
            for r in touched:
                if r in mf_w:
                    req(mf_w[r][0], MFMA_TO_OTHER)
            if i.kind in ("valu",):
                for r in i.vr:
                    if r in tr_w:
                        req(tr_w[r], 1)
            if i.kind in ("valu", "trans"):
                if i.mn.startswith("v_permlane"):
                    for r in i.vr:
                        if r in va_w:
                            req(va_w[r], 2)
                if i.mn.startswith("v_readfirstlane") or i.mn.startswith("v_readlane"):
                    for r in i.vr:
                        if r in va_w:
                            req(va_w[r], 1)
                for s in i.sr:
                    if s in vs_w:
                        req(vs_w[s], 2)
                if i.mn.startswith("v_cndmask") and len(i.ops) == 3:
                    for s in (106, 107):
                        if s in vs_w:
                            req(vs_w[s], 2)
                for r in i.vw:
                    if r in st_data:
                        req(st_data[r], 2)
            else:
                for r in i.vw:
                    if r in st_data:
                        req(st_data[r], 1)
            if i.kind in ("vmem", "dma"):
                for s in i.sr:
                    if s in vs_w:
                        req(vs_w[s], 5)
            if i.kind == "dma":
                req(m0_w, 1)
        while need > 0:
            n = min(need, 16)
            emit(I(f"s_nop {n-1}"))
            need -= n
        emit(i)
        if i.kind == "mfma":
            for r in i.vw:
                mf_w[r] = (pos, i.vw)
                va_w.pop(r, None); tr_w.pop(r, None)
        elif i.kind in ("valu", "trans"):
            for r in i.vw:
                va_w[r] = pos
                mf_w.pop(r, None)
                if i.kind == "trans":
                    tr_w[r] = pos
                else:
                    tr_w.pop(r, None)
            for s in i.sw:
                vs_w[s] = pos
        elif i.kind == "ds":
            lg.append((set(i.vw), i.tag))
            for r in i.vw:
                mf_w.pop(r, None); va_w.pop(r, None); tr_w.pop(r, None)
        elif i.kind in ("vmem", "dma"):
            vm.append(set(i.vw))
            if "store" in i.mn and ("x4" in i.mn or "x3" in i.mn):
                r0 = regs_of(i.ops[0] if i.mn.startswith("buffer") else i.ops[1])
                for r in r0[1]:
                    st_data[r] = pos
            for r in i.vw:
                mf_w.pop(r, None); va_w.pop(r, None); tr_w.pop(r, None)
        elif i.kind == "smem":
            smem_out = True
        elif i.kind == "salu":
            if 124 in i.sw:
                m0_w = pos
            for s in i.sw:
                vs_w.pop(s, None)
    return "\n".join(("" if x.kind == "pseudo" and x.mn.endswith(":") else "    ") + x.text for x in out) + "\n"
```

```python
import sys, math, struct
from asmlib import Stream

HDR = open("standalone__gqa_block_cached__near_ridge.s.ref").read().split("; Override launch")[0]

SLOT = 16384
NSLOT = 9
MISC = NSLOT * SLOT
LDS_BYTES = 163840


def f32bits(x):
    return struct.unpack("<I", struct.pack("<f", x))[0]


class Cfg:
    kv_aux = ""
    w_aux = ""
    st_aux = " sc0 sc1"
    PF = 5
    prio = True
    k2_waves = 4
    stamp = False


def build_schedule():
    segs = []

    def seg(name, needs=(), alloc=(), last=()):
        segs.append(dict(name=name, needs=list(needs), alloc=list(alloc), last=list(last)))

    X = [f"X{i}" for i in range(4)]
    WQ = [f"WQ{i}" for i in range(14)]
    K = [f"K{i}" for i in range(16)]
    V = [f"V{i}" for i in range(16)]
    WO = [f"WO{i}" for i in range(14)]
    seg("x", needs=X, last=X)
    for j in range(14):
        seg(f"wq{j}", needs=WQ[j:j + 2], last=[WQ[j]], alloc=(["QX0", "QX1"] if j == 13 else []))
    for i in range(16):
        seg(f"k{i}", needs=K[i:i + 2], last=[K[i]] + (["QX0", "QX1"] if i == 0 else []))
    seg("sm", alloc=["PX0", "PX1", "PX2", "PX3"])
    for v in range(16):
        seg(f"v{v}", needs=V[v:v + 2], last=[V[v]] + ([f"PX{v//4}"] if v % 4 == 3 else []),
            alloc=(["OX0", "OX1"] if v == 15 else []))
    for i in range(14):
        seg(f"wo{i}", needs=WO[i:i + 2], last=[WO[i]] + (["OX0", "OX1"] if i == 0 else []))
    order = X + WQ[0:3] + K[0:2] + WQ[3:5] + K[2:4] + WQ[5:14] + K[4:6] + ["QX0", "QX1"] + K[6:16] + V[0:5] + \
        ["PX0", "PX1", "PX2", "PX3"] + V[5:10] + WO[0:1] + V[10:14] + WO[1:2] + V[14:16] + WO[2:5] + ["OX0", "OX1"] + WO[5:14]
    assert len(order) == len(set(order)) == 4 + 14 + 16 + 16 + 14 + 8
    free = list(range(NSLOT))
    slot = {}
    issue_at = {}
    q = list(order)

    def alloc(k):
        while free and q:
            it = q.pop(0)
            slot[it] = free.pop(0)
            issue_at[it] = k

    alloc(-1)
    for k in range(len(segs)):
        if k > 0:
            for it in segs[k - 1]["last"]:
                free.append(slot[it])
        alloc(k)
        for it in segs[k]["needs"]:
            assert it in issue_at and issue_at[it] < k, (it, k, issue_at.get(it))
        for it in segs[k]["alloc"]:
            assert it in issue_at and issue_at[it] <= k, (it, k, issue_at.get(it))
    assert not q
    need_at = {}
    for k, s in enumerate(segs):
        for it in s["needs"]:
            need_at.setdefault(it, k)
    return segs, slot, issue_at, need_at, order


def gen_k1(cfg):
    segs, slot, issue_at, need_at, order = build_schedule()
    nseg = len(segs)
    sb = {it: s * SLOT for it, s in slot.items()}
    if cfg.verbose:
        for it in order:
            if it in need_at:
                print(f"  {it}: slot {slot[it]} issue@{issue_at[it]} need@{need_at[it]} lead {need_at[it]-issue_at[it]}", file=sys.stderr)

    txt = []
    P = Stream()
    P("""
    s_cmp_ge_u32 s2, 256
    s_cbranch_scc1 L1_end
    s_load_dwordx16 s[16:31], s[0:1], 0
    v_lshrrev_b32 v1, 6, v0
    v_and_b32 v0, 63, v0
    v_readfirstlane_b32 s3, v1
    s_and_b32 s4, s2, 7
    s_lshr_b32 s5, s2, 4
    s_bfe_u32 s7, s2, 0x10003
    s_lshl_b32 s6, s4, 1
    s_add_u32 s6, s6, s7
    s_cmp_ge_u32 s3, 6
    s_cbranch_scc1 L1_kvload
    s_cmp_ge_u32 s3, 4
    s_cbranch_scc1 L1_wload
    """)
    txt.append(P.finish())

    C = Stream()
    C("""
    s_and_b32 s8, s3, 1
    s_lshr_b32 s9, s3, 1
    """)
    if cfg.prio:
        C("s_setprio 2")
    C("""
    v_lshrrev_b32 v10, 5, v0
    v_bfe_u32 v11, v0, 4, 1
    v_bfe_u32 v12, v0, 2, 2
    v_and_b32 v13, 3, v0
    v_and_b32 v14, 31, v0
    """)
    VA = list(range(1, 9))
    VL = 9
    win = {}

    def setwin(reg, base=0):
        win[reg] = base

    def dsoff(reg, absoff):
        d = absoff - win[reg]
        if d < 0 or d > 65535 - 15:
            nb = (absoff // 65536) * 65536
            delta = nb - win[reg]
            if delta > 0:
                C(f"v_add_u32 v{reg}, {delta:#x}, v{reg}")
            else:
                C(f"v_subrev_u32 v{reg}, {-delta:#x}, v{reg}")
            win[reg] = nb
            d = absoff - nb
        return d

    FB = 16
    NB = 8
    BB = 48
    R_S = 64
    R_Q = 192

    C("""
    s_lshl_b32 s10, s9, 12
    v_lshlrev_b32 v15, 7, v14
    v_add_u32 v15, s10, v15
    v_bfe_u32 v5, v0, 1, 3
    v_xor_b32 v5, v5, v10
    """)
    for k4 in range(4):
        C(f"v_xor_b32 v6, {2*k4}, v5\n v_lshl_add_u32 v{VA[k4]}, v6, 4, v15")
        setwin(VA[k4])
    C("""
    s_lshl_b32 s10, s5, 4
    s_add_u32 s10, s10, s6
    s_mul_i32 s10, s10, 57344
    s_waitcnt lgkmcnt(0)
    s_add_u32 s32, s30, s10
    s_addc_u32 s33, s31, 0
    s_and_b32 s33, s33, 0xffff
    s_mov_b32 s34, 57344
    s_mov_b32 s35, 0x20000
    """)
    C(f"s_mov_b32 s12, {f32bits(math.log2(math.e) / 16.0):#x}")

    segi = [0]

    def barrier():
        k = segi[0]
        if k > 0:
            C("@drain " + " ".join(segs[k - 1]["last"]) if segs[k - 1]["last"] else "@nothing")
        C("s_barrier")
        segi[0] += 1

    barrier()
    for ks in range(28):
        pn, k4 = ks // 4, ks % 4
        it = f"X{pn//2}"
        off = dsoff(VA[k4], sb[it] + (pn % 2) * 8192)
        C(f"ds_read_b128 v[{R_S+4*ks}:{R_S+4*ks+3}], v{VA[k4]} offset:{off}", tag=it)

    def run_phase(frags, mfmas, fillers=None, pre=None, first_barrier_done=False, fill_rate=0, fill_start=0):
        n = len(mfmas)
        PF = cfg.PF
        fillers = list(fillers or [])
        for i in range(n):
            if i % 8 == 0:
                if not (i == 0 and first_barrier_done):
                    barrier()
                if i == 0:
                    if pre and -1 in pre:
                        pre[-1]()
                    for f in range(min(PF, n)):
                        frags[f](FB + 4 * (f % NB))
            if i + PF < n:
                frags[i + PF](FB + 4 * ((i + PF) % NB))
            if pre and i in pre:
                pre[i]()
            mfmas[i](FB + 4 * (i % NB))
            if callable(fillers):
                pass
            elif i >= fill_start:
                for _ in range(fill_rate):
                    if fillers:
                        C(fillers.pop(0))
        for f in fillers:
            C(f)

    def tr_addr_512(rowmul_half, pi):
        C(f"""
        v_lshl_add_u32 v15, v10, {rowmul_half}, v12
        v_lshlrev_b32 v15, 9, v15
        s_lshl_b32 s10, s8, 8
        v_add_u32 v15, s10, v15
        v_lshl_add_u32 v15, v11, 5, v15
        """)
        if pi:
            C("""
            v_and_b32 v5, 1, v13
            v_lshl_add_u32 v15, v5, 4, v15
            v_lshrrev_b32 v5, 1, v13
            v_lshl_add_u32 v15, v5, 3, v15
            """)
        else:
            C("v_lshl_add_u32 v15, v13, 3, v15")
        for i in range(4):
            C(f"v_xor_b32 v5, {i}, v12\n v_lshl_add_u32 v{VA[i]}, v5, 6, v15")
            setwin(VA[i])

    C("s_waitcnt lgkmcnt(0)")
    tr_addr_512(3, True)
    frags, mfmas = [], []
    for ks in range(28):
        it = f"WQ{ks//2}"
        for i in range(4):
            def fr(buf, it=it, ks=ks, i=i):
                for s in range(2):
                    off = dsoff(VA[i], sb[it] + (ks % 2) * 8192 + s * 2048)
                    C(f"ds_read_b64_tr_b16 v[{buf+2*s}:{buf+2*s+1}], v{VA[i]} offset:{off}", tag=it)
            def mf(buf, ks=ks, i=i):
                acc = f"v[{R_Q+16*i}:{R_Q+16*i+15}]"
                C(f"v_mfma_f32_32x32x16_bf16 {acc}, v[{buf}:{buf+3}], v[{R_S+4*ks}:{R_S+4*ks+3}], {acc if ks else 0}")
            frags.append(fr); mfmas.append(mf)
    run_phase(frags, mfmas)

    def exch_write(accbase, it0, it1, scale=None):
        C(f"""
        s_mul_i32 s10, s9, {sb[it1]-sb[it0]}
        s_add_u32 s10, s10, {sb[it0]}
        s_lshl_b32 s11, s8, 13
        s_add_u32 s11, s11, s10
        v_lshl_add_u32 v{VL}, v0, 4, s11
        """)
        for i in range(4):
            if scale is not None:
                for r in range(16):
                    C(f"v_mul_f32 v{accbase+16*i+r}, v{accbase+16*i+r}, v{scale}")
            for x in range(2):
                t = FB + 8 * i + 4 * x
                for r in range(4):
                    a = accbase + 16 * i + 8 * x + 2 * r
                    C(f"v_cvt_pk_bf16_f32 v{t+r}, v{a}, v{a+1}")
                C(f"ds_write_b128 v{VL}, v[{t}:{t+3}] offset:{(2*i+x)*1024}")
        C(f"v_lshl_add_u32 v{VL}, v0, 4, s10")
        C("s_waitcnt lgkmcnt(0)")

    def exch_read(dst, it0):
        for ks in range(16):
            C(f"ds_read_b128 v[{dst+4*ks}:{dst+4*ks+3}], v{VL} offset:{ks*1024}", tag=it0)

    exch_write(R_Q, "QX0", "QX1")

    C("""
    s_lshl_b32 s11, s8, 13
    v_lshlrev_b32 v15, 8, v14
    v_add_u32 v15, s11, v15
    v_and_b32 v5, 15, v0
    v_xor_b32 v5, v5, v10
    v_lshl_add_u32 v15, v5, 4, v15
    """)
    for ksl in range(8):
        C(f"v_xor_b32 v{VA[ksl]}, {32*ksl}, v15")
        setwin(VA[ksl])
    frags, mfmas = [], []
    for u in range(8):
        for ks in range(16):
            it = f"K{2*u + ks//8}"
            def fr(buf, it=it, ks=ks):
                off = dsoff(VA[ks % 8], sb[it])
                C(f"ds_read_b128 v[{buf}:{buf+3}], v{VA[ks%8]} offset:{off}", tag=it)
            def mf(buf, u=u, ks=ks):
                acc = f"v[{R_S+16*u}:{R_S+16*u+15}]"
                C(f"v_mfma_f32_32x32x16_bf16 {acc}, v[{buf}:{buf+3}], v[{R_Q+4*ks}:{R_Q+4*ks+3}], {acc if ks else 0}")
            frags.append(fr); mfmas.append(mf)
    VM = 10 + 0
    vM, vT, vLs, vMc = BB + 8, BB + 9, BB + 10, BB + 11
    pre = {-1: lambda: exch_read(R_Q, "QX0")}
    for u in range(1, 8):
        for k in range(8):
            def mx(u=u, k=k):
                a = R_S + 16 * (u - 1) + 2 * k
                if u == 1 and k == 0:
                    C(f"v_max_f32 v{vM}, v{a}, v{a+1}")
                else:
                    C(f"v_max3_f32 v{vM}, v{a}, v{a+1}, v{vM}")
            pre[16 * u + 6 + k] = mx
    run_phase(frags, mfmas, pre=pre)
    for k in range(8):
        a = R_S + 16 * 7 + 2 * k
        C(f"v_max3_f32 v{vM}, v{a}, v{a+1}, v{vM}")
    C(f"""
    v_mov_b32 v{vT}, v{vM}
    v_permlane32_swap_b32 v{vT}, v{vM}
    v_max_f32 v{vM}, v{vM}, v{vT}
    s_lshl_b32 s10, s3, 7
    s_add_u32 s10, s10, {MISC}
    v_lshl_add_u32 v1, v14, 2, s10
    s_xor_b32 s10, s10, 128
    v_lshl_add_u32 v2, v14, 2, s10
    ds_write_b32 v1, v{vM}
    s_waitcnt lgkmcnt(0)
    """)
    barrier()
    C(f"""
    ds_read_b32 v{vT}, v2
    s_lshl_b32 s10, s8, 12
    s_lshl_b32 s11, s9, 11
    s_add_u32 s10, s10, s11
    v_lshl_add_u32 v3, v0, 4, s10
    v_lshl_add_u32 v{VL}, v0, 4, s11
    v_max_f32 v{vM}, v{vM}, v{vT}
    v_mul_f32 v{vMc}, s12, v{vM}
    v_mov_b32 v{vLs}, 0
    """)
    setwin(3); setwin(VL)
    for u in range(8):
        for x in range(2):
            base = R_S + 16 * u + 8 * x
            for r in range(8):
                C(f"v_fma_f32 v{base+r}, v{base+r}, s12, -v{vMc}")
            for r in range(8):
                C(f"v_exp_f32 v{base+r}, v{base+r}")
            t = FB + 4 * ((2 * u + x) % NB)
            for r in range(4):
                C(f"v_cvt_pk_bf16_f32 v{t+r}, v{base+2*r}, v{base+2*r+1}")
            for r in range(8):
                C(f"v_add_f32 v{vLs}, v{vLs}, v{base+r}")
            off = dsoff(3, sb[f"PX{u//2}"] + (u % 2) * 8192 + x * 1024)
            C(f"ds_write_b128 v3, v[{t}:{t+3}] offset:{off}")
    C(f"""
    v_mov_b32 v{vT}, v{vLs}
    v_permlane32_swap_b32 v{vT}, v{vLs}
    v_add_f32 v{vLs}, v{vLs}, v{vT}
    ds_write_b32 v1, v{vLs} offset:512
    v_mov_b32 v{vM}, v2
    """)
    tr_addr_512(2, False)
    C("s_waitcnt lgkmcnt(0)")

    frags, mfmas = [], []
    pre = {}

    def bread(kstep):
        v, ks2 = kstep // 2, kstep % 2
        it = f"PX{v//4}"
        off = dsoff(VL, sb[it] + (v % 4) * 4096 + ks2 * 1024)
        b = BB + 4 * (kstep % 2)
        C(f"ds_read_b128 v[{b}:{b+3}], v{VL} offset:{off}", tag=it)

    for kstep in range(32):
        v, kk = kstep // 2, kstep % 2
        it = f"V{v}"
        for i in range(4):
            def fr(buf, it=it, kk=kk, i=i):
                for s in range(2):
                    off = dsoff(VA[i], sb[it] + kk * 8192 + s * 4096)
                    C(f"ds_read_b64_tr_b16 v[{buf+2*s}:{buf+2*s+1}], v{VA[i]} offset:{off}", tag=it)
            def mf(buf, kstep=kstep, i=i):
                acc = f"v[{R_Q+16*i}:{R_Q+16*i+15}]"
                b = BB + 4 * (kstep % 2)
                C(f"v_mfma_f32_32x32x16_bf16 {acc}, v[{buf}:{buf+3}], v[{b}:{b+3}], {acc if kstep else 0}")
            frags.append(fr); mfmas.append(mf)
        if kstep + 1 < 32:
            pre[4 * kstep + 0] = (lambda k=kstep + 1: bread(k))

    def p3pre():
        bread(0)
        C(f"ds_read_b32 v{vT}, v{vM} offset:512")
    pre[-1] = p3pre
    run_phase(frags, mfmas, pre=pre)
    C(f"""
    v_add_f32 v{vLs}, v{vLs}, v{vT}
    v_rcp_f32 v{vLs}, v{vLs}
    """)
    exch_write(R_Q, "OX0", "OX1", scale=vLs)

    C("""
    v_lshl_add_u32 v15, v10, 2, v12
    v_lshlrev_b32 v15, 7, v15
    v_lshrrev_b32 v5, 1, v12
    v_xor_b32 v5, s8, v5
    v_lshl_add_u32 v15, v5, 6, v15
    v_lshl_add_u32 v15, v11, 5, v15
    v_and_b32 v5, 1, v13
    v_lshl_add_u32 v15, v5, 4, v15
    v_lshrrev_b32 v5, 1, v13
    v_lshl_add_u32 v1, v5, 3, v15
    s_lshl_b32 s10, s8, 12
    s_lshl_b32 s11, s9, 11
    s_add_u32 s10, s10, s11
    v_lshl_add_u32 v2, v0, 4, s10
    """)
    setwin(1)
    R_O = R_S
    R_A4 = 128
    R_ST = 160
    frags, mfmas = [], []
    pre = {-1: lambda: exch_read(R_O, "OX0")}

    def store_panel(r):
        a = R_A4 + 16 * (r % 2)
        t = R_ST + 8 * (r % 2)
        for k in range(8):
            C(f"v_cvt_pk_bf16_f32 v{t+k}, v{a+2*k}, v{a+2*k+1}")
        C(f"s_mov_b32 s10, {r*8192}")
        for g2 in range(2):
            C(f"buffer_store_dwordx4 v[{t+4*g2}:{t+4*g2+3}], v2, s[32:35], s10 offen offset:{g2*1024}{cfg.st_aux}")

    for r in range(7):
        for ks in range(16):
            it = f"WO{2*r + ks//8}"
            def fr(buf, it=it, ks=ks):
                for s in range(2):
                    off = dsoff(1, sb[it] + (ks % 8) * 2048 + s * 1024)
                    C(f"ds_read_b64_tr_b16 v[{buf+2*s}:{buf+2*s+1}], v1 offset:{off}", tag=it)
            def mf(buf, r=r, ks=ks):
                acc = f"v[{R_A4+16*(r%2)}:{R_A4+16*(r%2)+15}]"
                C(f"v_mfma_f32_32x32x16_bf16 {acc}, v[{buf}:{buf+3}], v[{R_O+4*ks}:{R_O+4*ks+3}], {acc if ks else 0}")
            frags.append(fr); mfmas.append(mf)
        if r > 0:
            pre[16 * r + 4] = (lambda r=r: store_panel(r - 1))
    run_phase(frags, mfmas, pre=pre)
    store_panel(6)
    assert segi[0] == nseg, (segi[0], nseg)
    C("s_endpgm")
    txt.append(C.finish())

    def loader(kind):
        L = Stream()
        L(f"L1_{kind}load:")
        L("""
        s_and_b32 s8, s3, 1
        s_lshl_b32 s9, s8, 10
        """)
        if kind == "w":
            mine = [it for it in order if it.startswith("X") or it.startswith("WQ") or it.startswith("WO")]
            L("""
            v_lshrrev_b32 v4, 3, v0
            v_and_b32 v5, 7, v0
            v_lshrrev_b32 v6, 4, v0
            s_lshl_b32 s10, s8, 2
            v_add_u32 v6, s10, v6
            v_xor_b32 v6, v6, v5
            v_mul_u32_u24 v7, 896, v4
            s_mul_i32 s10, s8, 7168
            v_add_u32 v7, s10, v7
            v_lshl_add_u32 v1, v6, 4, v7
            v_bfe_u32 v6, v0, 4, 1
            v_lshlrev_b32 v6, 2, v6
            v_xor_b32 v6, v6, v5
            v_lshl_add_u32 v3, v6, 4, v7
            v_lshrrev_b32 v4, 5, v0
            v_and_b32 v5, 31, v0
            s_lshl_b32 s10, s8, 1
            v_add_u32 v6, s10, v4
            v_lshlrev_b32 v7, 13, v6
            v_lshlrev_b32 v6, 2, v6
            v_xor_b32 v6, v6, v5
            v_lshl_add_u32 v2, v6, 4, v7
            s_mul_i32 s10, s5, 57344
            s_lshl_b32 s11, s6, 9
            s_mul_i32 s12, s6, 229376
            s_waitcnt lgkmcnt(0)
            s_add_u32 s32, s16, s10
            s_addc_u32 s33, s17, 0
            s_and_b32 s33, s33, 0xffff
            s_mov_b32 s34, 57344
            s_mov_b32 s35, 0x20000
            s_add_u32 s36, s22, s11
            s_addc_u32 s37, s23, 0
            s_and_b32 s37, s37, 0xffff
            s_sub_u32 s38, 3670016, s11
            s_mov_b32 s39, 0x20000
            s_add_u32 s40, s24, s12
            s_addc_u32 s41, s25, 0
            s_and_b32 s41, s41, 0xffff
            s_mov_b32 s42, 229376
            s_mov_b32 s43, 0x20000
            """)
        else:
            mine = [it for it in order if it.startswith("K") or it.startswith("V")]
            L("""
            v_lshrrev_b32 v4, 4, v0
            v_and_b32 v5, 15, v0
            s_lshl_b32 s10, s8, 2
            v_add_u32 v6, s10, v4
            v_lshlrev_b32 v7, 9, v6
            v_xor_b32 v6, v6, v5
            v_lshl_add_u32 v1, v6, 4, v7
            v_xor_b32 v6, 8, v6
            v_lshl_add_u32 v2, v6, 4, v7
            v_lshrrev_b32 v4, 5, v0
            v_and_b32 v5, 31, v0
            s_lshl_b32 s10, s8, 1
            v_add_u32 v6, s10, v4
            v_lshlrev_b32 v7, 9, v6
            v_lshlrev_b32 v6, 2, v6
            v_xor_b32 v6, v6, v5
            v_lshl_add_u32 v3, v6, 4, v7
            s_lshl_b32 s10, s5, 3
            s_add_u32 s10, s10, s4
            s_lshl_b32 s10, s10, 18
            s_waitcnt lgkmcnt(0)
            s_add_u32 s32, s18, s10
            s_addc_u32 s33, s19, 0
            s_and_b32 s33, s33, 0xffff
            s_mov_b32 s34, 262144
            s_mov_b32 s35, 0x20000
            s_add_u32 s36, s20, s10
            s_addc_u32 s37, s21, 0
            s_and_b32 s37, s37, 0xffff
            s_mov_b32 s38, 262144
            s_mov_b32 s39, 0x20000
            """)
        issued = []

        def dma(it, ldsoff, goff, vreg, srd, aux):
            L(f"s_add_u32 m0, s9, {ldsoff}")
            L(f"s_mov_b32 s10, {goff}")
            L(f"buffer_load_dwordx4 v{vreg}, s[{srd}:{srd+3}], s10 offen{aux} lds")
            issued.append(it)

        def issue(it):
            base = sb[it]
            if it.startswith("X"):
                xi = int(it[1:])
                for pn in range(2 * xi, min(2 * xi + 2, 7)):
                    for n2 in range(4):
                        dma(it, base + (pn % 2) * 8192 + n2 * 2048, 16 * n2 * 896 + pn * 128, 1, 32, cfg.w_aux)
            elif it.startswith("WQ"):
                j = int(it[2:])
                for n2 in range(8):
                    dma(it, base + n2 * 2048, (32 * j + 4 * n2) * 8192, 2, 36, cfg.w_aux)
            elif it.startswith("WO"):
                i = int(it[2:]); r, e = i // 2, i % 2
                for n2 in range(8):
                    dma(it, base + n2 * 2048, (128 * e + 16 * n2) * 896 + r * 128, 3, 40, cfg.w_aux)
            elif it.startswith("K"):
                i = int(it[1:]); u, e = i // 2, i % 2
                for n2 in range(8):
                    dma(it, base + n2 * 2048, (64 * u + 8 * n2) * 512 + e * 256, 1 + (n2 & 1), 32, cfg.kv_aux)
            elif it.startswith("V"):
                v = int(it[1:])
                for n2 in range(8):
                    dma(it, base + n2 * 2048, v * 16384 + n2 * 2048, 3, 36, cfg.kv_aux)

        last_need = max(need_at[it] for it in mine)
        for it in mine:
            if issue_at[it] == -1:
                issue(it)
        done_upto = -1
        for k in range(nseg):
            idx = -1
            for it in segs[k]["needs"]:
                if it in mine:
                    idx = max(idx, max(n for n, x in enumerate(issued) if x == it))
            if idx > done_upto:
                n = len(issued) - 1 - idx
                assert n <= 63
                L(f"s_waitcnt vmcnt({n})")
                done_upto = idx
            L("s_barrier")
            if k >= last_need:
                break
            for it in mine:
                if issue_at[it] == k:
                    issue(it)
        L("s_endpgm")
        return L.finish()

    txt.append(loader("w"))
    txt.append(loader("kv"))
    txt.append("L1_end:\n    s_endpgm\n")
    return "".join(txt)


def gen_k2(cfg):
    S = Stream()
    nw = cfg.k2_waves
    nwg = 896 // nw
    S(f"""
    s_cmp_ge_u32 s2, {nwg}
    s_cbranch_scc1 L2_end
    s_load_dwordx2 s[16:17], s[0:1], 40
    s_load_dwordx2 s[18:19], s[0:1], 56
    v_lshrrev_b32 v1, 6, v0
    v_and_b32 v0, 63, v0
    v_readfirstlane_b32 s3, v1
    s_mul_i32 s4, s2, {nw}
    s_add_u32 s4, s4, s3
    s_and_b32 s5, s4, 3
    s_bfe_u32 s6, s4, 0x10002
    s_lshr_b32 s7, s4, 3
    s_mul_i32 s8, s7, 9363
    s_lshr_b32 s8, s8, 16
    s_mul_i32 s9, s8, 7
    s_sub_u32 s9, s7, s9
    """)
    for t in range(112):
        assert (t * 9363) >> 16 == t // 7
    S("""
    v_lshrrev_b32 v2, 5, v0
    v_lshlrev_b32 v2, 12, v2
    v_bfe_u32 v3, v0, 3, 2
    v_lshl_add_u32 v2, v3, 9, v2
    v_and_b32 v3, 7, v0
    v_lshl_add_u32 v2, v3, 4, v2
    s_lshl_b32 s10, s9, 13
    s_lshl_b32 s11, s6, 11
    s_add_u32 s10, s10, s11
    s_lshl_b32 s11, s5, 7
    s_add_u32 s10, s10, s11
    s_mul_i32 s11, s8, 917504
    s_add_u32 s10, s10, s11
    v_add_u32 v2, s10, v2
    s_lshl_b32 s12, s8, 6
    s_lshl_b32 s13, s6, 5
    s_add_u32 s12, s12, s13
    s_lshl_b32 s13, s5, 3
    s_add_u32 s12, s12, s13
    s_mul_i32 s12, s12, 896
    s_lshl_b32 s13, s9, 7
    s_add_u32 s12, s12, s13
    v_mul_u32_u24 v4, 896, v3
    v_lshrrev_b32 v3, 3, v0
    v_lshl_add_u32 v4, v3, 4, v4
    v_add_u32 v4, s12, v4
    s_waitcnt lgkmcnt(0)
    s_mov_b32 s20, s18
    s_and_b32 s21, s19, 0xffff
    s_mov_b32 s22, 14680064
    s_mov_b32 s23, 0x20000
    s_mov_b32 s24, s16
    s_and_b32 s25, s17, 0xffff
    s_mov_b32 s26, 917504
    s_mov_b32 s27, 0x20000
    """)
    for p in range(16):
        S(f"s_mov_b32 s10, {p*57344}\n buffer_load_dwordx4 v[{16+4*p}:{16+4*p+3}], v2, s[20:23], s10 offen{cfg.k2_ld_aux}")
    for p in range(16):
        for r in range(4):
            src = 16 + 4 * p + r
            if p == 0:
                S(f"v_lshlrev_b32 v{8+2*r}, 16, v{src}\n v_and_b32 v{9+2*r}, 0xffff0000, v{src}")
            else:
                S(f"v_lshlrev_b32 v5, 16, v{src}\n v_and_b32 v6, 0xffff0000, v{src}\n v_add_f32 v{8+2*r}, v{8+2*r}, v5\n v_add_f32 v{9+2*r}, v{9+2*r}, v6")
    for r in range(4):
        S(f"v_cvt_pk_bf16_f32 v{16+r}, v{8+2*r}, v{9+2*r}")
    S("buffer_store_dwordx4 v[16:19], v4, s[24:27], 0 offen")
    S("L2_end:\n s_endpgm")
    return S.finish(), nwg, nw


def kd(name, vgpr, sgpr):
    return f""".section .rodata,"a"
.p2align 6
.amdhsa_kernel {name}
  .amdhsa_next_free_vgpr {vgpr}
  .amdhsa_next_free_sgpr {sgpr}
  .amdhsa_accum_offset {(vgpr+3)//4*4}
  .amdhsa_group_segment_fixed_size 0
  .amdhsa_kernarg_size 64
  .amdhsa_user_sgpr_count 2
  .amdhsa_user_sgpr_kernarg_segment_ptr 1
  .amdhsa_system_sgpr_workgroup_id_x 1
.end_amdhsa_kernel
.text
"""


def head(name):
    return f".globl {name}\n.p2align 8\n.type {name},@function\n{name}:\n"


def generate(cfg):
    k1 = gen_k1(cfg)
    k2, nwg2, nw2 = gen_k2(cfg)
    s = HDR
    s += f"; @launch kernel=gqa_main_kernel grid=(256,1,1) block=(512,1,1) lds={LDS_BYTES}\n"
    s += f"; @launch kernel=gqa_reduce_kernel grid=({nwg2},1,1) block=({nw2*64},1,1) lds=0\n"
    s += '.amdgcn_target "amdgcn-amd-amdhsa--gfx950"\n.text\n'
    s += head("gqa_main_kernel") + k1 + kd("gqa_main_kernel", 256, 64)
    s += head("gqa_reduce_kernel") + k2 + kd("gqa_reduce_kernel", 80, 32)
    return s


if __name__ == "__main__":
    cfg = Cfg()
    cfg.verbose = False
    cfg.k2_ld_aux = ""
    out = sys.argv[1] if len(sys.argv) > 1 else "k.s"
    for a in sys.argv[2:]:
        k, v = a.split("=", 1)
        cur = getattr(cfg, k)
        if isinstance(cur, bool):
            v = v == "1"
        elif isinstance(cur, int):
            v = int(v)
        else:
            v = (" " + v.replace("+", " ")) if v else ""
        setattr(cfg, k, v)
    open(out, "w").write(generate(cfg))
```

```python
import sys
KN = "standalone__gqa_block_cached__near_ridge_kernel"

def footer(name, vgpr=64, sgpr=64):
    return f"""
.section .rodata,"a"
.p2align 6
.amdhsa_kernel {name}
  .amdhsa_next_free_vgpr {vgpr}
  .amdhsa_next_free_sgpr {sgpr}
  .amdhsa_accum_offset {(vgpr+3)//4*4}
  .amdhsa_group_segment_fixed_size 0
  .amdhsa_kernarg_size 64
  .amdhsa_user_sgpr_count 2
  .amdhsa_user_sgpr_kernarg_segment_ptr 1
  .amdhsa_system_sgpr_workgroup_id_x 1
.end_amdhsa_kernel
.text
"""
def header(name):
    return f""".globl {name}
.p2align 8
.type {name},@function
{name}:
"""
TOP = '.amdgcn_target "amdgcn-amd-amdhsa--gfx950"\n.text\n'

def empty(n):
    if n == 1:
        return f"; @launch grid=(256,1,1) block=(256,1,1) lds=0\n" + TOP + header(KN) + "s_endpgm\n" + footer(KN)
    s = "".join(f"; @launch kernel=e{i}_kernel grid=(256,1,1) block=(256,1,1) lds=0\n" for i in range(n)) + TOP
    for i in range(n):
        s += header(f"e{i}_kernel") + "s_endpgm\n" + footer(f"e{i}_kernel")
    return s

def stream(mode, nw, depth, nt=False, weights=False, rot=False):
    lds = 131072
    o = [f"; @launch grid=(256,1,1) block=({nw*64},1,1) lds={lds}\n" + TOP + header(KN)]
    A = o.append
    A("s_cmp_ge_u32 s2, 256\n s_cbranch_scc1 L_end\n")
    A("s_load_dwordx4 s[4:7], s[0:1], 8\n")
    A("s_load_dwordx4 s[36:39], s[0:1], 24\n")
    A("v_lshrrev_b32 v1, 6, v0\n s_nop 0\n v_readfirstlane_b32 s20, v1\n")
    A("v_and_b32 v2, 63, v0\n v_lshlrev_b32 v2, 4, v2\n")
    A("s_and_b32 s21, s2, 7\n s_lshr_b32 s22, s2, 4\n s_bfe_u32 s23, s2, 0x10003\n")
    A("s_lshl_b32 s24, s22, 3\n s_add_u32 s24, s24, s21\n s_lshl_b32 s24, s24, 18\n")
    A("s_waitcnt lgkmcnt(0)\n")
    A("s_mov_b32 s8, s4\n s_and_b32 s9, s5, 0xffff\n s_mov_b32 s10, 0x2000000\n s_mov_b32 s11, 0x20000\n")
    A("s_mov_b32 s12, s6\n s_and_b32 s13, s7, 0xffff\n s_mov_b32 s14, 0x2000000\n s_mov_b32 s15, 0x20000\n")
    A("s_mov_b32 s40, s36\n s_and_b32 s41, s37, 0xffff\n s_mov_b32 s42, 3670016\n s_mov_b32 s43, 0x20000\n")
    A("s_mov_b32 s44, s38\n s_and_b32 s45, s39, 0xffff\n s_mov_b32 s46, 3670016\n s_mov_b32 s47, 0x20000\n")
    per_t = 262144 if mode == "pair" else 131072
    if mode == "uniq":
        A("s_lshl_b32 s25, s23, 17\n s_add_u32 s24, s24, s25\n")
    ninstr = per_t // 1024 // nw
    aux = " nt" if nt else ""
    ldsmask = lds - 1
    def loop(srd, label, base_s, n, stride_total, rotate=False):
        A(f"s_lshl_b32 s26, s20, 10\n")
        if rotate:
            A(f"s_mul_i32 s29, s23, {stride_total*n//2}\n s_add_u32 s26, s26, s29\n")
        A(f"s_mov_b32 s28, 0\n")
        A(f"{label}:\n")
        A(f"s_add_u32 s29, s26, {base_s}\n")
        A(f"s_mov_b32 m0, s27\n s_nop 0\n")
        A(f"buffer_load_dwordx4 v2, s[{srd}:{srd+3}], s29 offen{aux} lds\n")
        A(f"s_add_u32 s26, s26, {stride_total}\n")
        if rotate:
            A(f"s_and_b32 s26, s26, {stride_total*n-1}\n")
        A(f"s_add_u32 s27, s27, {nw*1024}\n s_and_b32 s27, s27, {ldsmask}\n")
        A(f"s_waitcnt vmcnt({depth})\n")
        A(f"s_add_u32 s28, s28, 1\n s_cmp_lt_u32 s28, {n}\n s_cbranch_scc1 {label}\n")
    A("s_lshl_b32 s27, s20, 10\n")
    if weights:
        A("s_lshl_b32 s30, s21, 1\n s_add_u32 s30, s30, s23\n s_mul_i32 s30, s30, 229376\n")
        loop(40, "L_wq", "s30", 224 // nw, nw * 1024)
    loop(8, "L_k", "s24", ninstr, nw * 1024, rot)
    loop(12, "L_v", "s24", ninstr, nw * 1024, rot)
    if weights:
        loop(44, "L_wo", "s30", 224 // nw, nw * 1024)
    A("s_waitcnt vmcnt(0)\n")
    A("L_end:\n s_endpgm\n")
    A(footer(KN))
    return "".join(o)

if __name__ == "__main__":
    open("mb_empty1.s", "w").write(empty(1))
    open("mb_empty2.s", "w").write(empty(2))
    open("mb_empty3.s", "w").write(empty(3))
    for mode in ("pair", "uniq"):
        for nw in (4, 8):
            for depth in (8, 16, 28):
                if nw * (depth + 1) > 128: continue
                open(f"mb_{mode}_w{nw}_d{depth}.s", "w").write(stream(mode, nw, depth))
    open("mb_pair_w4_d28_nt.s", "w").write(stream("pair", 4, 28, nt=True))
    open("mb_uniq_w4_d28_nt.s", "w").write(stream("uniq", 4, 28, nt=True))
    open("mb_pair_w4_d28_rot.s", "w").write(stream("pair", 4, 28, rot=True))
    open("mb_pair_w4_d28_W.s", "w").write(stream("pair", 4, 28, weights=True))
    open("mb_pair_w8_d8_W.s", "w").write(stream("pair", 8, 8, weights=True))
    open("mb_pair_w4_d16_W.s", "w").write(stream("pair", 4, 16, weights=True))
```

```python
from gen_mb import footer, header, TOP, KN
def t(pattern, xor=True, unit=2, patB=None, rolebit="s23"):
    o = [f"; @launch grid=(256,1,1) block=(256,1,1) lds=163840\n" + TOP + header(KN)]
    A = o.append
    A("s_cmp_ge_u32 s2, 256\n s_cbranch_scc1 L_end\n")
    A("s_load_dwordx4 s[4:7], s[0:1], 8\n s_load_dwordx4 s[60:63], s[0:1], 24\n s_load_dwordx2 s[36:37], s[0:1], 56\n")
    A("v_lshrrev_b32 v1, 6, v0\n v_and_b32 v3, 63, v0\n v_readfirstlane_b32 s20, v1\n")
    A("v_lshlrev_b32 v2, 4, v3\n v_lshlrev_b32 v4, 7, v3\n")
    A("s_and_b32 s21, s2, 7\n s_lshr_b32 s22, s2, 4\n s_bfe_u32 s23, s2, 0x10003\n")
    A("s_lshl_b32 s24, s22, 3\n s_add_u32 s24, s24, s21\n s_lshl_b32 s24, s24, 18\n")
    A("s_lshl_b32 s25, s20, 10\n v_add_u32 v2, s25, v2\n")
    A(f"s_mul_i32 s26, s23, {unit*16384 if xor else 0}\n s_sub_u32 s27, 0, s26\n")
    A("s_lshl_b32 s30, s21, 1\n s_add_u32 s30, s30, s23\n s_mul_i32 s30, s30, 229376\n")
    A("s_waitcnt lgkmcnt(0)\n")
    A("s_add_u32 s8, s4, s24\n s_addc_u32 s9, s5, 0\n s_and_b32 s9, s9, 0xffff\n s_mov_b32 s10, 0x40000\n s_mov_b32 s11, 0x20000\n")
    A("s_add_u32 s16, s6, s24\n s_addc_u32 s17, s7, 0\n s_and_b32 s17, s17, 0xffff\n s_mov_b32 s18, 0x40000\n s_mov_b32 s19, 0x20000\n")
    A("s_add_u32 s40, s62, s30\n s_addc_u32 s41, s63, 0\n s_and_b32 s41, s41, 0xffff\n s_mov_b32 s42, 229376\n s_mov_b32 s43, 0x20000\n")
    A("s_mov_b32 s12, s36\n s_and_b32 s13, s37, 0xffff\n s_mov_b32 s14, 0x100000\n s_mov_b32 s15, 0x20000\n")
    A("s_mul_i32 s31, s20, 57344\n")
    for i in range(7):
        A(f"s_add_u32 s29, s31, {i*8192}\n buffer_load_dword v8, v4, s[40:43], s29 offen\n")
    A("s_waitcnt vmcnt(0)\n s_barrier\n s_memrealtime s[44:45]\n s_memtime s[48:49]\n s_waitcnt lgkmcnt(0)\n")
    def emit(pattern):
        ins = {"k": [], "w": [], "m": [], "h": []}
        for i in range(32):
            srd = 8 if i < 16 else 16
            ii = i % 16
            far = (ii // unit) % 2 == 0
            sj = "s26" if far else "s27"
            it = [f"s_add_u32 s29, {sj}, {ii*16384+n*4096}\n buffer_load_dwordx4 v2, s[{srd}:{srd+3}], s29 offen lds\n" for n in range(4)]
            ins["k"].append(it); ins["m" if far else "h"].append(it)
        for i in range(64):
            ins["w"].append([f"s_mov_b32 s29, {(i%14)*16384+n*4096}\n buffer_load_dwordx4 v2, s[40:43], s29 offen lds\n" for n in range(4)])
        seq = []
        for tok in pattern:
            seq += ins[tok].pop(0)
        for n, x in enumerate(seq):
            A(f"s_add_u32 m0, s25, {(n % 40) * 4096}\n" + x + "s_waitcnt vmcnt(24)\n")
    if patB:
        A(f"s_cmp_eq_u32 {rolebit}, 1\n s_cbranch_scc1 L_B\n")
    emit(pattern)
    if patB:
        A("s_branch L_J\nL_B:\n")
        emit(patB)
        A("L_J:\n")
    A("s_waitcnt vmcnt(0)\n s_memrealtime s[46:47]\n s_memtime s[50:51]\n s_waitcnt lgkmcnt(0)\n s_sub_u32 s46, s46, s44\n s_sub_u32 s50, s50, s48\n")
    A("s_lshl_b32 s44, s2, 3\n s_add_u32 s44, s44, s20\n s_lshl_b32 s44, s44, 2\n")
    A("v_mov_b32 v8, s46\n v_mov_b32 v9, s44\n v_mov_b32 v10, s50\n v_cmp_eq_u32 vcc, 0, v3\n s_and_saveexec_b64 s[46:47], vcc\n")
    A("buffer_store_dword v8, v9, s[12:15], 0 offen\n buffer_store_dword v10, v9, s[12:15], 0 offen offset:16\n s_waitcnt vmcnt(0)\n")
    A("L_end:\n s_endpgm\n")
    A(footer(KN, 64, 80))
    return "".join(o)
F = {
 "seq": t("w"*16 + "k"*32 + "w"*16),
 "ra8": t("wwm"*8 + "hm"*8 + "hww"*8, unit=1),
 "ra8u2": t("wwwwmm"*4 + "hhmm"*4 + "hhwwww"*4, unit=2),
 "ra16": t("wm"*16 + "hw"*16, unit=1),
 "ra12": t("wmwmwmww"*0 + "wwmwm"*0 + ("wm"*12 + "w"*4) + "hhhm"*4 + "h"*4 + "w"*16, unit=1),
 "ra4": t("wwwwm"*4 + "hm"*12 + "h"*4 + "w"*16, unit=1),
 "uni": t("wmwh"*16, unit=1),
 "monly": t("m"*16, unit=1),
 "mfirst": t("m"*16 + "w"*16 + "h"*16 + "w"*16, unit=1),
}
for k, v in F.items(): open(f"m16_{k}.s", "w").write(v)
print(" ".join("m16_"+k for k in F))
```

```python
from gen_mb import footer, header, TOP, KN
def t(kind, stag, width=4):
    o = [f"; @launch grid=(256,1,1) block=(256,1,1) lds=65536\n" + TOP + header(KN)]
    A = o.append
    A("s_cmp_ge_u32 s2, 256\n s_cbranch_scc1 L_end\n")
    A("s_load_dwordx2 s[36:37], s[0:1], 56\n")
    A("v_lshrrev_b32 v1, 6, v0\n v_and_b32 v3, 63, v0\n v_readfirstlane_b32 s20, v1\n v_lshlrev_b32 v7, 4, v0\n v_lshlrev_b32 v6, 3, v3\n v_add_u32 v5, 0x8000, v7\n")
    A("s_waitcnt lgkmcnt(0)\n")
    A("s_mov_b32 s12, s36\n s_and_b32 s13, s37, 0xffff\n s_mov_b32 s14, 0x4000000\n s_mov_b32 s15, 0x20000\n s_lshl_b32 s31, s2, 16\n s_add_u32 s31, s31, 0x100000\n")
    for r in range(16, 200): A(f"v_mov_b32 v{r}, 0\n")
    A("s_mov_b32 s28, 0\n s_barrier\n s_memtime s[40:41]\n s_waitcnt lgkmcnt(0)\n")
    A("L_loop:\n s_barrier\n")
    for i in range(8):
        a = 16 + 4 * (i % 8); nx = 16 + 4 * ((i + 5) % 8)
        A(f"v_mfma_f32_32x32x16_bf16 v[64:79], v[{a}:{a+3}], v[48:51], v[64:79]\n")
        A(f"ds_read_b64_tr_b16 v[{nx}:{nx+1}], v6 offset:{1024*i}\n ds_read_b64_tr_b16 v[{nx+2}:{nx+3}], v6 offset:{1024*i+512}\n s_waitcnt lgkmcnt(8)\n")
        op = {"st": ("buffer_store_dwordx4 v[100:103], v7, s[12:15], s31 offen sc0 sc1\n" if width == 4 else "buffer_store_dwordx2 v[100:101], v7, s[12:15], s31 offen sc0 sc1\n buffer_store_dwordx2 v[102:103], v7, s[12:15], s31 offen offset:8 sc0 sc1\n"),
              "dw": "ds_write_b128 v5, v[100:103]\n", "none": ""}[kind]
        if stag:
            if i % 2 == 0:
                A(f"s_cmp_lg_u32 s20, {i//2}\n s_cbranch_scc1 L_s{i}\n {op}L_s{i}:\n")
        elif i == 2:
            A(op)
    A(f"s_add_u32 s31, s31, 4096\n s_and_b32 s31, s31, 0xffffbfff\n s_add_u32 s28, s28, 1\n s_cmp_lt_u32 s28, 64\n s_cbranch_scc1 L_loop\n")
    A("s_waitcnt lgkmcnt(0)\n")
    A("s_memtime s[42:43]\n s_waitcnt lgkmcnt(0)\n s_sub_u32 s42, s42, s40\n s_waitcnt vmcnt(0)\n")
    A("s_lshl_b32 s44, s2, 3\n s_add_u32 s44, s44, s20\n s_lshl_b32 s44, s44, 2\n")
    A("v_mov_b32 v8, s42\n v_mov_b32 v9, s44\n v_cmp_eq_u32 vcc, 0, v3\n s_and_saveexec_b64 s[46:47], vcc\n")
    A("buffer_store_dword v8, v9, s[12:15], 0 offen\n s_waitcnt vmcnt(0)\n")
    A("L_end:\n s_endpgm\n")
    A(footer(KN, 256, 64))
    return "".join(o)
F = {"none": t("none", False), "st": t("st", False), "st_stag": t("st", True), "dw": t("dw", False), "dw_stag": t("dw", True), "st2": t("st", False, 2)}
for k, v in F.items(): open(f"m17_{k}.s", "w").write(v)
print(" ".join("m17_"+k for k in F))
```

```python
from gen_mb import footer, header, TOP, KN
def t(pattern, xor=True, unit=2, patB=None, rolebit="s23", aux="", half=False):
    o = [f"; @launch grid=(256,1,1) block=(256,1,1) lds=163840\n" + TOP + header(KN)]
    A = o.append
    A("s_cmp_ge_u32 s2, 256\n s_cbranch_scc1 L_end\n")
    A("s_load_dwordx4 s[4:7], s[0:1], 8\n s_load_dwordx4 s[60:63], s[0:1], 24\n s_load_dwordx2 s[36:37], s[0:1], 56\n")
    A("v_lshrrev_b32 v1, 6, v0\n v_and_b32 v3, 63, v0\n v_readfirstlane_b32 s20, v1\n")
    A("v_lshlrev_b32 v2, 4, v3\n v_lshlrev_b32 v4, 7, v3\n")
    A("s_and_b32 s21, s2, 7\n s_lshr_b32 s22, s2, 4\n s_bfe_u32 s23, s2, 0x10003\n")
    A("s_lshl_b32 s24, s22, 3\n s_add_u32 s24, s24, s21\n s_lshl_b32 s24, s24, 18\n")
    A("s_lshl_b32 s25, s20, 10\n v_add_u32 v2, s25, v2\n")
    A("v_lshrrev_b32 v5, 4, v3\n v_lshlrev_b32 v5, 9, v5\n v_and_b32 v6, 15, v3\n v_lshl_add_u32 v5, v6, 4, v5\n s_lshl_b32 s28, s20, 11\n v_add_u32 v5, s28, v5\n")
    A(f"s_mul_i32 s26, s23, {unit*16384 if xor else 0}\n s_sub_u32 s27, 0, s26\n")
    A("s_lshl_b32 s30, s21, 1\n s_add_u32 s30, s30, s23\n s_mul_i32 s30, s30, 229376\n")
    A("s_waitcnt lgkmcnt(0)\n")
    A("s_add_u32 s8, s4, s24\n s_addc_u32 s9, s5, 0\n s_and_b32 s9, s9, 0xffff\n s_mov_b32 s10, 0x40000\n s_mov_b32 s11, 0x20000\n")
    A("s_add_u32 s16, s6, s24\n s_addc_u32 s17, s7, 0\n s_and_b32 s17, s17, 0xffff\n s_mov_b32 s18, 0x40000\n s_mov_b32 s19, 0x20000\n")
    A("s_add_u32 s40, s62, s30\n s_addc_u32 s41, s63, 0\n s_and_b32 s41, s41, 0xffff\n s_mov_b32 s42, 229376\n s_mov_b32 s43, 0x20000\n")
    A("s_mov_b32 s12, s36\n s_and_b32 s13, s37, 0xffff\n s_mov_b32 s14, 0x100000\n s_mov_b32 s15, 0x20000\n")
    A("s_mul_i32 s31, s20, 57344\n")
    for i in range(7):
        A(f"s_add_u32 s29, s31, {i*8192}\n buffer_load_dword v8, v4, s[40:43], s29 offen\n")
    A("s_waitcnt vmcnt(0)\n s_barrier\n s_memrealtime s[44:45]\n s_memtime s[48:49]\n s_waitcnt lgkmcnt(0)\n")
    def emit(pattern):
        ins = {"k": [], "w": [], "m": [], "h": []}
        for i in range(32):
            srd = 8 if i < 16 else 16
            ii = i % 16
            far = (ii // unit) % 2 == 0
            sj = "s26" if far else "s27"
            it = [f"s_add_u32 s29, {sj}, {ii*16384+n*4096}\n buffer_load_dwordx4 v2, s[{srd}:{srd+3}], s29 offen{aux} lds\n" for n in range(4)]
            if half:
                it = [f"s_add_u32 s29, {sj}, {(ii//2)*32768+(ii%2)*256+n*8192}\n buffer_load_dwordx4 v5, s[{srd}:{srd+3}], s29 offen{aux} lds\n" for n in range(4)]
            ins["k"].append(it); ins["m" if far else "h"].append(it)
        for i in range(64):
            ins["w"].append([f"s_mov_b32 s29, {(i%14)*16384+n*4096}\n buffer_load_dwordx4 v2, s[40:43], s29 offen lds\n" for n in range(4)])
        seq = []
        for tok in pattern:
            seq += ins[tok].pop(0)
        for n, x in enumerate(seq):
            A(f"s_add_u32 m0, s25, {(n % 40) * 4096}\n" + x + "s_waitcnt vmcnt(24)\n")
    if patB:
        A(f"s_cmp_eq_u32 {rolebit}, 1\n s_cbranch_scc1 L_B\n")
    emit(pattern)
    if patB:
        A("s_branch L_J\nL_B:\n")
        emit(patB)
        A("L_J:\n")
    A("s_waitcnt vmcnt(0)\n s_memrealtime s[46:47]\n s_memtime s[50:51]\n s_waitcnt lgkmcnt(0)\n s_sub_u32 s46, s46, s44\n s_sub_u32 s50, s50, s48\n")
    A("s_lshl_b32 s44, s2, 3\n s_add_u32 s44, s44, s20\n s_lshl_b32 s44, s44, 2\n")
    A("v_mov_b32 v8, s46\n v_mov_b32 v9, s44\n v_mov_b32 v10, s50\n v_cmp_eq_u32 vcc, 0, v3\n s_and_saveexec_b64 s[46:47], vcc\n")
    A("buffer_store_dword v8, v9, s[12:15], 0 offen\n buffer_store_dword v10, v9, s[12:15], 0 offen offset:16\n s_waitcnt vmcnt(0)\n")
    A("L_end:\n s_endpgm\n")
    A(footer(KN, 64, 80))
    return "".join(o)
F = {
 "lin": t("k"*32, xor=False), "lin_nt": t("k"*32, xor=False, aux=" nt"), "half": t("k"*32, xor=False, half=True), "half_nt": t("k"*32, xor=False, aux=" nt", half=True),
 "linx": t("k"*32), "halfx": t("k"*32, half=True), "m_nt": t("m"*16, unit=2, aux=" nt"), "m_half_nt": t("m"*16, unit=2, aux=" nt", half=True),
}
for k, v in F.items(): open(f"m19_{k}.s", "w").write(v)
print(" ".join("m19_"+k for k in F))
```
